```python
import torch

def _softmax(x, axis=-1):
    return torch.softmax(x, dim=axis)
def _gelu(x):
    return torch.nn.functional.gelu(x, approximate="tanh")
def _silu(x):
    return torch.nn.functional.silu(x)
def _sigmoid(x):
    return torch.sigmoid(x)
def _layernorm(x, axis=-1, eps=1e-5):
    m = x.mean(dim=axis, keepdim=True)
    v = x.var(dim=axis, keepdim=True, unbiased=False)
    return (x - m) / torch.sqrt(v + eps)
def _scatter_add(tgt, idx, src, axis=0):
    return tgt.clone().index_add_(axis, idx, src)
def _segment_sum(src, seg, n):
    out = torch.zeros((n,) + src.shape[1:], dtype=src.dtype)
    return out.index_add_(0, seg, src)
def _pad(x, pw):
    flat = tuple(v for pair in reversed(pw) for v in pair)
    return torch.nn.functional.pad(x, flat)

kernel_name = 'standalone__qk_norm__prompt'

def setup_inputs():

    _w = (lambda a: (lambda t: t.to(torch.bfloat16) if t.is_floating_point() else t)(torch.as_tensor(a)))
    B, H, S, D = 2, 32, 2048, 640
    Dh = D // H
    return {
        "q": _w((lambda *s: torch.randn(*s, dtype=torch.bfloat16) * 0.05)(B, H, S, Dh)),
        "k": _w((lambda *s: torch.randn(*s, dtype=torch.bfloat16) * 0.05)(B, H, S, Dh)),
        "v": _w((lambda *s: torch.randn(*s, dtype=torch.bfloat16) * 0.8)(B, H, S, Dh)),
        "t": _w(torch.abs((lambda *s: torch.randn(*s, dtype=torch.bfloat16) * 0.8)(H)) + 1.0),
    }

def reference(q, k, v, t):
    eps = 1e-6
    qn = q / (torch.sqrt((q * q).sum(axis=-1, keepdims=True)) + eps)
    kn = k / (torch.sqrt((k * k).sum(axis=-1, keepdims=True)) + eps)
    logits = torch.einsum('bhqd,bhkd->bhqk', qn, kn) * t[None, :, None, None]
    attn = _softmax(logits, axis=-1)
    return torch.einsum('bhqk,bhkd->bhqd', attn, v)
```

```python
import sys

OUT = sys.argv[1] if len(sys.argv) > 1 else 'standalone__qk_norm__prompt.s'

REF = open('standalone__qk_norm__prompt.s.ref').read()
PRE, REST = REF.split('standalone__qk_norm__prompt_kernel:\n', 1)
_, POST = REST.split('s_endpgm\n', 1)

SLOT = 2592
NSLOT = 63
RING = SLOT * NSLOT
VOFF = 1280
LDS = RING

L = []
def e(s): L.append('    ' + s)
def lab(s): L.append(s + ':')
def c(s): L.append('    ; ' + s)

def vr(b, n=1):
    return 'v%d' % b if n == 1 else 'v[%d:%d]' % (b, b + n - 1)

SA, SB, OA, OB, CB = 16, 32, 48, 64, 80
QA1, QA2, QB1, QB2 = 96, 100, 102, 106
K1, K2 = 108, 112
V0, V1 = 114, 118
P, T = 122, 130
aK1, aK2, aV = 138, 139, 140
bK1, bK2, bV = 141, 142, 143
wK1, wK2, wV, gOff = 144, 145, 146, 147
KS, VS = 148, 158
TMP = 168
vT = 192
mA, mB = 193, 194
NV = 200

sQ, sK, sV, sO = 20, 24, 28, 32
sHead, sQoff, sRound, sIter, sMask, sT, sAbsT, sPass = 16, 17, 18, 19, 36, 37, 38, 39
sTau = 40

def norm(X, scale=None):
    a, b = TMP, TMP + 1
    e(f'v_dot2_f32_bf16 {vr(a)}, {vr(X)}, {vr(X)}, 0')
    e(f'v_dot2_f32_bf16 {vr(b)}, {vr(X+1)}, {vr(X+1)}, 0')
    for i in range(2, 10):
        r = a if i % 2 == 0 else b
        e(f'v_dot2_f32_bf16 {vr(r)}, {vr(X+i)}, {vr(X+i)}, {vr(r)}')
    e('s_nop 2')
    e(f'v_add_f32 {vr(a)}, {vr(a)}, {vr(b)}')
    e(f'v_sqrt_f32 {vr(a)}, {vr(a)}')
    e('s_nop 0')
    e(f'v_add_f32 {vr(a)}, 0x358637bd, {vr(a)}')
    e(f'v_rcp_f32 {vr(a)}, {vr(a)}')
    e('s_nop 0')
    if scale is not None:
        e(f'v_mul_f32 {vr(a)}, {vr(a)}, {vr(scale)}')
    for i in range(10):
        lo, hi = TMP + 2 + 2 * (i % 4), TMP + 3 + 2 * (i % 4)
        e(f'v_lshlrev_b32 {vr(lo)}, 16, {vr(X+i)}')
        e(f'v_and_b32 {vr(hi)}, s{sMask}, {vr(X+i)}')
        e(f'v_mul_f32 {vr(lo)}, {vr(lo)}, {vr(a)}')
        e(f'v_mul_f32 {vr(hi)}, {vr(hi)}, {vr(a)}')
        e(f'v_cvt_pk_bf16_f32 {vr(X+i)}, {vr(lo)}, {vr(hi)}')

def load_rows(X, srd, soff):
    e(f'buffer_load_dwordx4 {vr(X,4)}, {vr(gOff)}, s[{srd}:{srd+3}], s{soff} offen')
    e(f'buffer_load_dwordx4 {vr(X+4,4)}, {vr(gOff)}, s[{srd}:{srd+3}], s{soff} offen offset:16')
    e(f'buffer_load_dwordx2 {vr(X+8,2)}, {vr(gOff)}, s[{srd}:{srd+3}], s{soff} offen offset:32')

def write_k(a1, a2):
    e(f'ds_write_b128 {vr(a1)}, {vr(KS,4)}')
    e(f'ds_write_b128 {vr(a1)}, {vr(KS+4,4)} offset:512')
    e(f'ds_write_b64 {vr(a2)}, {vr(KS+8,2)}')

def write_v(a):
    e(f'ds_write2_b64 {vr(a)}, {vr(VS,2)}, {vr(VS+2,2)} offset0:0 offset1:1')
    e(f'ds_write2_b64 {vr(a)}, {vr(VS+4,2)}, {vr(VS+6,2)} offset0:2 offset1:3')
    e(f'ds_write_b64 {vr(a)}, {vr(VS+8,2)} offset:32')

class Q:
    def __init__(self, init=()):
        self.q = list(init)
    def issue(self, tag):
        self.q.append(tag)
    def need(self, tag):
        if tag in self.q:
            last = max(i for i, t in enumerate(self.q) if t == tag)
            n = len(self.q) - 1 - last
            e(f's_waitcnt lgkmcnt({n})')
            self.q = self.q[last + 1:]

def rd_k1(q, a, off):
    e(f'ds_read_b128 {vr(K1,4)}, {vr(a)} offset:{off}'); q.issue('K1')
def rd_k2(q, a, off):
    e(f'ds_read_b64 {vr(K2,2)}, {vr(a)} offset:{off}'); q.issue('K2')
def rd_v(q, u, a, off):
    R = V0 if u == 0 else V1
    for x in range(2):
        e(f'ds_read_b64_tr_b16 {vr(R+2*x,2)}, {vr(a)} offset:{off + (2*u+x)*328}'); q.issue('V%d' % u)

def mfma16(D, A, B, C):
    e(f'v_mfma_f32_32x32x16_bf16 {vr(D,16)}, {vr(A,4)}, {vr(B,4)}, {C}')
def mfma8(D, A, B, C):
    e(f'v_mfma_f32_32x32x8_bf16 {vr(D,16)}, {vr(A,2)}, {vr(B,2)}, {C}')

def cvts(p0, t0):
    e(f'v_cvt_pk_bf16_f32 {vr(P+p0)}, {vr(T+t0)}, {vr(T+t0+1)}')
    e(f'v_cvt_pk_bf16_f32 {vr(P+p0+1)}, {vr(T+t0+2)}, {vr(T+t0+3)}')
def exps(S, s0, t0):
    for i in range(4):
        e(f'v_exp_f32 {vr(T+t0+i)}, {vr(S+s0+i)}')

def a_part(q, addr, j, last=False):
    c(f'A-part tile+{j}')
    q.need('K1')
    mfma16(SB, K1, QB1, vr(CB, 16))
    if not last:
        rd_k1(q, *addr('K1', j + 1))
    cvts(6, 4)
    exps(SA, 0, 0)
    q.need('V1')
    mfma16(OB, V1, P + 4, vr(OB, 16))
    rd_v(q, 1, *addr('V', j))
    cvts(0, 0)
    exps(SA, 4, 4)
    q.need('K2')
    mfma8(SB, K2, QB2, vr(SB, 16))
    if not last:
        rd_k2(q, *addr('K2', j + 1))
    cvts(2, 4)
    exps(SA, 8, 0)
    q.need('V0')
    mfma16(OA, V0, P, vr(OA, 16))
    cvts(4, 0)
    exps(SA, 12, 4)

def b_part(q, addr, j, last=False):
    c(f'B-part tile+{j}')
    if not last:
        q.need('K1')
        mfma16(SA, K1, QA1, vr(CB, 16))
    cvts(6, 4)
    exps(SB, 0, 0)
    q.need('V1')
    mfma16(OA, V1, P + 4, vr(OA, 16))
    cvts(0, 0)
    exps(SB, 4, 4)
    if not last:
        q.need('K2')
        mfma8(SA, K2, QA2, vr(SA, 16))
    cvts(2, 4)
    exps(SB, 8, 0)
    q.need('V0')
    mfma16(OB, V0, P, vr(OB, 16))
    if not last:
        rd_v(q, 0, *addr('V', j + 1))
    cvts(4, 0)
    exps(SB, 12, 4)

K = 'standalone__qk_norm__prompt_kernel'
e('s_cmp_ge_u32 s2, 256')
e('s_cbranch_scc1 L_end')
e(f's_load_dwordx2 s[{sQ}:{sQ+1}], s[0:1], 0')
e(f's_load_dwordx2 s[{sK}:{sK+1}], s[0:1], 8')
e(f's_load_dwordx2 s[{sV}:{sV+1}], s[0:1], 16')
e('s_load_dwordx2 s[10:11], s[0:1], 24')
e(f's_load_dwordx2 s[{sO}:{sO+1}], s[0:1], 32')
for s in (sQ, sK, sV, sO):
    e(f's_mov_b32 s{s+2}, 5242880')
    e(f's_mov_b32 s{s+3}, 0x00020000')
e('s_and_b32 s14, s2, 7')
e('s_lshr_b32 s15, s2, 5')
e('s_lshl_b32 s15, s15, 3')
e('s_add_u32 s14, s14, s15')
e('s_lshr_b32 s15, s2, 3')
e('s_and_b32 s15, s15, 3')
e(f's_mul_i32 s{sHead}, s14, 81920')
e('s_mul_i32 s15, s15, 20480')
e(f's_add_u32 s{sQoff}, s{sHead}, s15')
e(f's_mov_b32 s{sRound}, s{sHead}')
e(f's_mov_b32 s{sMask}, 0xffff0000')
e('s_and_b32 s14, s14, 31')
e('s_lshr_b32 s15, s14, 1')
e('s_lshl_b32 s15, s15, 2')
e('s_and_b32 s14, s14, 1')
e('s_lshl_b32 s14, s14, 4')
e(f'v_mul_u32_u24 {vr(gOff)}, 40, v0')
e('v_and_b32 v1, 63, v0')
e('v_and_b32 v2, 31, v0')
e('v_lshrrev_b32 v3, 5, v0')
e('s_waitcnt lgkmcnt(0)')
e('s_load_dword s12, s[10:11], s15')
load_rows(TMP + 10, sQ, sQoff)
load_rows(KS, sK, sRound)
load_rows(VS, sV, sRound)
e(f'v_mul_u32_u24 v4, {SLOT}, v3')
e('v_lshlrev_b32 v5, 4, v2')
e(f'v_add_u32 {vr(wK1)}, v4, v5')
e('v_lshlrev_b32 v5, 3, v2')
e(f'v_add3_u32 {vr(wK2)}, v4, v5, 1024'.replace('1024', '0'))
L.pop()
e(f'v_add_u32 {vr(wK2)}, v4, v5')
e(f'v_add_u32 {vr(wK2)}, 1024, {vr(wK2)}')
e('v_mul_u32_u24 v5, 40, v2')
e('v_lshrrev_b32 v6, 3, v2')
e('v_lshlrev_b32 v6, 3, v6')
e(f'v_add3_u32 {vr(wV)}, v4, v5, v6')
e(f'v_add_u32 {vr(wV)}, {VOFF}, {vr(wV)}')
e(f'v_lshlrev_b32 {vr(aK1)}, 4, v1')
e(f'v_lshlrev_b32 {vr(aK2)}, 3, v2')
e(f'v_add_u32 {vr(aK2)}, 1024, {vr(aK2)}')
e('v_lshrrev_b32 v4, 5, v1')
e('v_lshlrev_b32 v4, 2, v4')
e('v_bfe_u32 v5, v1, 2, 2')
e('v_add_u32 v4, v4, v5')
e('v_mul_u32_u24 v4, 40, v4')
e('v_and_b32 v5, 3, v1')
e('v_lshlrev_b32 v6, 3, v5')
e('v_add_u32 v6, v4, v6')
e('v_add_u32 v7, 32, v4')
e('v_mov_b32 v8, 320')
e('v_cmp_eq_u32 vcc, 0, v5')
e('s_nop 1')
e('v_cndmask_b32 v7, v8, v7, vcc')
e('v_and_b32 v5, 16, v1')
e('v_cmp_eq_u32 vcc, 0, v5')
e('s_nop 1')
e('v_cndmask_b32 v6, v7, v6, vcc')
e(f'v_add_u32 {vr(aV)}, {VOFF}, v6')
e(f'v_mov_b32 {vr(bK1)}, {vr(aK1)}')
e(f'v_mov_b32 {vr(bK2)}, {vr(aK2)}')
e(f'v_mov_b32 {vr(bV)}, {vr(aV)}')
e('v_min_u32 v4, 251, v0')
e('v_lshrrev_b32 v5, 2, v4')
e(f'v_mul_u32_u24 v5, {SLOT}, v5')
e('v_and_b32 v4, 3, v4')
e('v_mul_u32_u24 v4, 328, v4')
e(f'v_add3_u32 v4, v4, v5, {VOFF+320}'.replace(f', {VOFF+320}', ', 0'))
e(f'v_add_u32 v4, {VOFF+320}, v4')
e('v_mov_b32 v6, 0x3f80')
e('v_mov_b32 v7, 0')
e('ds_write_b64 v4, v[6:7]')
for i in range(16):
    e(f'v_mov_b32 {vr(OA+i)}, 0')
    e(f'v_mov_b32 {vr(OB+i)}, 0')
for r in list(range(T + 4, T + 8)) + [P + 4, P + 5] + list(range(V1, V1 + 4)):
    e(f'v_mov_b32 {vr(r)}, 0')
e('s_waitcnt lgkmcnt(0)')
e('s_lshr_b32 s12, s12, s14')
e(f's_lshl_b32 s{sT}, s12, 16')
e(f's_and_b32 s{sAbsT}, s{sT}, 0x7fffffff')
e(f's_cmp_le_u32 s{sAbsT}, 0x41300000')
e(f's_cselect_b32 s{sPass}, 1, 0')
e(f's_and_b32 s13, s{sT}, 0x80000000')
e('s_or_b32 s13, s13, 0x3f800000')
e(f'v_mov_b32 {vr(vT)}, s{sT}')
e(f'v_mul_f32 {vr(vT)}, 0x3fb8aa3b, {vr(vT)}')
e(f'v_mul_f32 v4, |{vr(vT)}|, -1.0')
e('v_mul_f32 v4, 0x3f8147ae, v4')
for i in range(16):
    e(f'v_mov_b32 {vr(CB+i)}, v4')
e(f's_cmp_eq_u32 s{sPass}, 1')
e('s_cbranch_scc1 L_qprep')
e(f'v_mov_b32 {vr(vT)}, s13')
lab('L_qprep')
QX = TMP + 10
e('s_waitcnt vmcnt(6)')
norm(QX, vT)
Z0, Z1 = TMP + 20, TMP + 21
e(f'v_mov_b32 {vr(Z0)}, 0')
e(f'v_mov_b32 {vr(Z1)}, 0')
e('s_nop 1')
for r in range(4):
    e(f'v_permlane32_swap_b32 {vr(QX+r)}, {vr(QX+4+r)}')
e(f'v_permlane32_swap_b32 {vr(QX+8)}, {vr(Z0)}')
e(f'v_permlane32_swap_b32 {vr(QX+9)}, {vr(Z1)}')
e('s_nop 1')
for r in range(4):
    e(f'v_mov_b32 {vr(QA1+r)}, {vr(QX+r)}')
    e(f'v_mov_b32 {vr(QB1+r)}, {vr(QX+4+r)}')
e(f'v_mov_b32 {vr(QA2)}, {vr(QX+8)}')
e(f'v_mov_b32 {vr(QA2+1)}, {vr(QX+9)}')
e(f'v_mov_b32 {vr(QB2)}, {vr(Z0)}')
e(f'v_mov_b32 {vr(QB2+1)}, {vr(Z1)}')
e(f's_cmp_eq_u32 s{sPass}, 0')
e('s_cbranch_scc1 L_slow')
e(f's_mov_b32 s{sIter}, -3')
lab('L_prep')
e('s_waitcnt vmcnt(0)')
norm(KS)
e(f'v_subrev_u32 {vr(TMP)}, {RING}, {vr(wK1)}')
e(f'v_subrev_u32 {vr(TMP+1)}, {RING}, {vr(wK2)}')
e(f'v_subrev_u32 {vr(TMP+2)}, {RING}, {vr(wV)}')
e(f'v_min_u32 {vr(TMP)}, {vr(TMP)}, {vr(wK1)}')
e(f'v_min_u32 {vr(TMP+1)}, {vr(TMP+1)}, {vr(wK2)}')
e(f'v_min_u32 {vr(TMP+2)}, {vr(TMP+2)}, {vr(wV)}')
write_k(TMP, TMP + 1)
write_v(TMP + 2)
e(f'v_add_u32 {vr(wK1)}, {16*SLOT}, {vr(wK1)}')
e(f'v_add_u32 {vr(wK2)}, {16*SLOT}, {vr(wK2)}')
e(f'v_add_u32 {vr(wV)}, {16*SLOT}, {vr(wV)}')
e(f's_add_u32 s{sRound}, s{sRound}, 20480')
e(f's_cmp_ge_i32 s{sIter}, 16')
e('s_cbranch_scc1 L_noload')
e('s_waitcnt lgkmcnt(0)')
load_rows(KS, sK, sRound)
load_rows(VS, sV, sRound)
lab('L_noload')
e('s_waitcnt lgkmcnt(0)')
e(f's_cmp_ge_i32 s{sIter}, 0')
e('s_cbranch_scc1 L_loop')
e('s_barrier')
e(f's_mov_b32 s{sIter}, 0')
q = Q()
rd_k1(q, aK1, 0)
rd_k2(q, aK2, 0)
rd_v(q, 0, aV, 0)
q.need('K1')
mfma16(SA, K1, QA1, vr(CB, 16))
q.need('K2')
mfma8(SA, K2, QA2, vr(SA, 16))
e('s_nop 7')
e('s_nop 7')
def addr_loop(stream, t):
    return ({'K1': aK1, 'K2': aK2, 'V': aV}[stream], t * SLOT)
e('.p2align 6')
lab('L_loop')
q = Q(['V0', 'V0'])
a_part(q, addr_loop, 0)
b_part(q, addr_loop, 0)
a_part(q, addr_loop, 1)
b_part(q, addr_loop, 1)
assert q.q == ['V0', 'V0'], q.q
e(f'v_add_u32 {vr(aK1)}, {2*SLOT}, {vr(aK1)}')
e(f'v_add_u32 {vr(aK2)}, {2*SLOT}, {vr(aK2)}')
e(f'v_add_u32 {vr(aV)}, {2*SLOT}, {vr(aV)}')
e(f's_add_u32 s{sIter}, s{sIter}, 1')
e(f's_cmp_eq_u32 s{sIter}, 31')
e('s_cbranch_scc1 L_last')
e(f's_and_b32 s12, s{sIter}, 7')
e('s_cmp_eq_u32 s12, 5')
e('s_cbranch_scc1 L_maybe_prep')
e('s_cmp_lg_u32 s12, 7')
e('s_cbranch_scc1 L_loop')
e('s_barrier')
e('s_branch L_loop')
lab('L_maybe_prep')
e(f's_cmp_lt_u32 s{sIter}, 24')
e('s_cbranch_scc1 L_prep')
e('s_branch L_loop')
lab('L_last')
def addr_last(stream, t):
    if t == 0:
        return ({'K1': aK1, 'K2': aK2, 'V': aV}[stream], 0)
    assert t == 1
    return ({'K1': bK1, 'K2': bK2, 'V': bV}[stream], 0)
q = Q(['V0', 'V0'])
a_part(q, addr_last, 0)
b_part(q, addr_last, 0)
a_part(q, addr_last, 1, last=True)
b_part(q, addr_last, 1, last=True)
cvts(6, 4)
e('s_nop 1')
mfma16(OB, V1, P + 4, vr(OB, 16))
lab('L_epi')
e('s_nop 7')
e('s_nop 7')
W = TMP
def epi(O, Wb):
    l0, l1 = Wb + 6, Wb + 7
    e(f'v_mov_b32 {vr(l0)}, {vr(O+8)}')
    e(f'v_mov_b32 {vr(l1)}, {vr(O+8)}')
    e('s_nop 1')
    e(f'v_permlane32_swap_b32 {vr(l0)}, {vr(l1)}')
    e('s_nop 1')
    e(f'v_rcp_f32 {vr(l1)}, {vr(l1)}')
    e('s_nop 0')
    for i in range(12):
        e(f'v_mul_f32 {vr(O+i)}, {vr(O+i)}, {vr(l1)}')
    for i in range(6):
        e(f'v_cvt_pk_bf16_f32 {vr(Wb+i)}, {vr(O+2*i)}, {vr(O+2*i+1)}')
    e('s_nop 1')
    e(f'v_permlane32_swap_b32 {vr(Wb)}, {vr(Wb+2)}')
    e(f'v_permlane32_swap_b32 {vr(Wb+1)}, {vr(Wb+3)}')
WA, WB_ = TMP, TMP + 8
epi(OA, WA)
epi(OB, WB_)
e(f'v_permlane32_swap_b32 {vr(WA+4)}, {vr(WB_+4)}')
e(f'v_permlane32_swap_b32 {vr(WA+5)}, {vr(WB_+5)}')
e('v_and_b32 v1, 32, v0')
e('v_mul_u32_u24 v2, 40, v1')
e('v_lshrrev_b32 v1, 1, v1')
e(f'v_sub_u32 v3, {vr(gOff)}, v2')
e('v_add_u32 v3, v3, v1')
e('s_nop 0')
e(f'buffer_store_dwordx4 {vr(WA,4)}, v3, s[{sO}:{sO+3}], s{sQoff} offen')
e(f'buffer_store_dwordx4 {vr(WB_,4)}, v3, s[{sO}:{sO+3}], s{sQoff} offen offset:1280')
e(f'buffer_store_dwordx2 {vr(WA+4,2)}, {vr(gOff)}, s[{sO}:{sO+3}], s{sQoff} offen offset:32')
e('s_endpgm')
lab('L_slow')
e(f'v_mov_b32 {vr(mA)}, 0xff800000')
e(f'v_mov_b32 {vr(mB)}, 0xff800000')
e(f's_mov_b32 s{sPass}, 0')
lab('L_s_pass')
e(f's_mov_b32 s{sRound}, s{sHead}')
e(f's_mov_b32 s{sIter}, 0')
lab('L_s_round')
e('s_waitcnt vmcnt(0) lgkmcnt(0)')
e('s_barrier')
load_rows(KS, sK, sRound)
load_rows(VS, sV, sRound)
e('s_waitcnt vmcnt(0)')
norm(KS)
write_k(wK1, wK2)
write_v(wV)
e('s_waitcnt lgkmcnt(0)')
e('s_barrier')
e(f'v_mov_b32 {vr(aK1)}, {vr(bK1)}')
e(f'v_mov_b32 {vr(aK2)}, {vr(bK2)}')
e(f'v_mov_b32 {vr(aV)}, {vr(bV)}')
e(f's_mov_b32 s{sTau}, 0')
lab('L_s_tile')
q = Q()
rd_k1(q, aK1, 0)
rd_k2(q, aK2, 0)
rd_v(q, 0, aV, 0)
rd_v(q, 1, aV, 0)
e('s_waitcnt lgkmcnt(0)')
mfma16(SA, K1, QA1, '0')
mfma16(SB, K1, QB1, '0')
mfma8(SA, K2, QA2, vr(SA, 16))
mfma8(SB, K2, QB2, vr(SB, 16))
e('s_nop 7')
e('s_nop 7')
e(f's_cmp_eq_u32 s{sPass}, 1')
e('s_cbranch_scc1 L_s_pv')
for i in range(0, 16, 2):
    e(f'v_max3_f32 {vr(mA)}, {vr(SA+i)}, {vr(SA+i+1)}, {vr(mA)}')
    e(f'v_max3_f32 {vr(mB)}, {vr(SB+i)}, {vr(SB+i+1)}, {vr(mB)}')
e('s_branch L_s_next')
lab('L_s_pv')
for (S, O, m) in ((SA, OA, mA), (SB, OB, mB)):
    for i in range(16):
        e(f'v_sub_f32 {vr(S+i)}, {vr(S+i)}, {vr(m)}')
        e(f'v_mul_f32 {vr(S+i)}, s{sAbsT}, {vr(S+i)}')
        e(f'v_mul_f32 {vr(S+i)}, 0x3fb8aa3b, {vr(S+i)}')
        e(f'v_exp_f32 {vr(S+i)}, {vr(S+i)}')
    e('s_nop 0')
    for i in range(8):
        e(f'v_cvt_pk_bf16_f32 {vr(P+i)}, {vr(S+2*i)}, {vr(S+2*i+1)}')
    e('s_nop 1')
    mfma16(O, V0, P, vr(O, 16))
    mfma16(O, V1, P + 4, vr(O, 16))
    e('s_nop 7')
lab('L_s_next')
e(f'v_add_u32 {vr(aK1)}, {SLOT}, {vr(aK1)}')
e(f'v_add_u32 {vr(aK2)}, {SLOT}, {vr(aK2)}')
e(f'v_add_u32 {vr(aV)}, {SLOT}, {vr(aV)}')
e(f's_add_u32 s{sTau}, s{sTau}, 1')
e(f's_cmp_lt_u32 s{sTau}, 16')
e('s_cbranch_scc1 L_s_tile')
e(f's_add_u32 s{sRound}, s{sRound}, 20480')
e(f's_add_u32 s{sIter}, s{sIter}, 1')
e(f's_cmp_lt_u32 s{sIter}, 4')
e('s_cbranch_scc1 L_s_round')
e(f's_cmp_eq_u32 s{sPass}, 1')
e('s_cbranch_scc1 L_epi')
for m in (mA, mB):
    e(f'v_mov_b32 {vr(TMP)}, {vr(m)}')
    e(f'v_mov_b32 {vr(TMP+1)}, {vr(m)}')
    e('s_nop 1')
    e(f'v_permlane32_swap_b32 {vr(TMP)}, {vr(TMP+1)}')
    e('s_nop 1')
    e(f'v_max_f32 {vr(m)}, {vr(TMP)}, {vr(TMP+1)}')
e(f's_mov_b32 s{sPass}, 1')
e('s_branch L_s_pass')
lab('L_end')

hdr = PRE.replace('; @launch grid=(10240,1,1) block=(256,1,1) lds=0',
                  f'; @launch grid=(256,1,1) block=(512,1,1) lds={LDS}')
post = POST.replace('.amdhsa_next_free_vgpr 256', f'.amdhsa_next_free_vgpr {NV}').replace(
    '.amdhsa_accum_offset 256', f'.amdhsa_accum_offset {NV}')
open(OUT, 'w').write(hdr + K + ':\n' + '\n'.join(L) + '\ns_endpgm\n' + post)
print('wrote', OUT, len(L), 'lines')
```

```python
import sys

OUT = sys.argv[1] if len(sys.argv) > 1 else 'standalone__qk_norm__prompt.s'

REF = open('standalone__qk_norm__prompt.s.ref').read()
PRE, REST = REF.split('standalone__qk_norm__prompt_kernel:\n', 1)
_, POST = REST.split('s_endpgm\n', 1)

SLOT = 2592
NSLOT = 63
RING = SLOT * NSLOT
VOFF = 1280
LDS = RING

L = []
import os
TIMING = int(os.environ.get('TIMING','0'))
_ts = [0]
def ts():
    if TIMING:
        i=_ts[0]; _ts[0]+=1
        L.append(f'    s_memtime s[{50+2*i}:{51+2*i}]')
        L.append(f'    s_waitcnt lgkmcnt(0)')
def e(s): L.append('    ' + s)
def lab(s): L.append(s + ':')
def c(s): L.append('    ; ' + s)

def vr(b, n=1):
    return 'v%d' % b if n == 1 else 'v[%d:%d]' % (b, b + n - 1)

SA, SB, OA, OB, CB = 16, 32, 48, 64, 80
QA1, QA2, QB1, QB2 = 96, 100, 102, 106
K1, K2 = 108, 112
V0, V1 = 114, 118
P, T = 122, 130
aK1, aK2, aV = 138, 139, 140
bK1, bK2, bV = 141, 142, 143
wK1, wK2, wV, gOff = 144, 145, 146, 147
KS, VS = 148, 158
TMP = 168
vT = 192
mA, mB = 193, 194
NV = 200

sQ, sK, sV, sO = 20, 24, 28, 32
sHead, sQoff, sRound, sIter, sMask, sT, sAbsT, sPass = 16, 17, 18, 19, 36, 37, 38, 39
sTau = 40

def norm(X, scale=None):
    a, b = TMP, TMP + 1
    e(f'v_dot2_f32_bf16 {vr(a)}, {vr(X)}, {vr(X)}, 0')
    e(f'v_dot2_f32_bf16 {vr(b)}, {vr(X+1)}, {vr(X+1)}, 0')
    for i in range(2, 10):
        r = a if i % 2 == 0 else b
        e(f'v_dot2_f32_bf16 {vr(r)}, {vr(X+i)}, {vr(X+i)}, {vr(r)}')
    e('s_nop 2')
    e(f'v_add_f32 {vr(a)}, {vr(a)}, {vr(b)}')
    e(f'v_sqrt_f32 {vr(a)}, {vr(a)}')
    e('s_nop 0')
    e(f'v_add_f32 {vr(a)}, 0x358637bd, {vr(a)}')
    e(f'v_rcp_f32 {vr(a)}, {vr(a)}')
    e('s_nop 0')
    if scale is not None:
        e(f'v_mul_f32 {vr(a)}, {vr(a)}, {vr(scale)}')
    for i in range(10):
        lo, hi = TMP + 2 + 2 * (i % 4), TMP + 3 + 2 * (i % 4)
        e(f'v_lshlrev_b32 {vr(lo)}, 16, {vr(X+i)}')
        e(f'v_and_b32 {vr(hi)}, s{sMask}, {vr(X+i)}')
        e(f'v_mul_f32 {vr(lo)}, {vr(lo)}, {vr(a)}')
        e(f'v_mul_f32 {vr(hi)}, {vr(hi)}, {vr(a)}')
        e(f'v_cvt_pk_bf16_f32 {vr(X+i)}, {vr(lo)}, {vr(hi)}')

def load_rows(X, srd, soff):
    e(f'buffer_load_dwordx4 {vr(X,4)}, {vr(gOff)}, s[{srd}:{srd+3}], s{soff} offen')
    e(f'buffer_load_dwordx4 {vr(X+4,4)}, {vr(gOff)}, s[{srd}:{srd+3}], s{soff} offen offset:16')
    e(f'buffer_load_dwordx2 {vr(X+8,2)}, {vr(gOff)}, s[{srd}:{srd+3}], s{soff} offen offset:32')

def write_k(a1, a2):
    e(f'ds_write_b128 {vr(a1)}, {vr(KS,4)}')
    e(f'ds_write_b128 {vr(a1)}, {vr(KS+4,4)} offset:512')
    e(f'ds_write_b64 {vr(a2)}, {vr(KS+8,2)}')

def write_v(a):
    e(f'ds_write2_b64 {vr(a)}, {vr(VS,2)}, {vr(VS+2,2)} offset0:0 offset1:1')
    e(f'ds_write2_b64 {vr(a)}, {vr(VS+4,2)}, {vr(VS+6,2)} offset0:2 offset1:3')
    e(f'ds_write_b64 {vr(a)}, {vr(VS+8,2)} offset:32')

class Q:
    def __init__(self, init=()):
        self.q = list(init)
    def issue(self, tag):
        self.q.append(tag)
    def need(self, tag):
        if tag in self.q:
            last = max(i for i, t in enumerate(self.q) if t == tag)
            n = len(self.q) - 1 - last
            e(f's_waitcnt lgkmcnt({n})')
            self.q = self.q[last + 1:]

def rd_k1(q, a, off):
    e(f'ds_read_b128 {vr(K1,4)}, {vr(a)} offset:{off}'); q.issue('K1')
def rd_k2(q, a, off):
    e(f'ds_read_b64 {vr(K2,2)}, {vr(a)} offset:{off}'); q.issue('K2')
def rd_v(q, u, a, off):
    R = V0 if u == 0 else V1
    for x in range(2):
        e(f'ds_read_b64_tr_b16 {vr(R+2*x,2)}, {vr(a)} offset:{off + (2*u+x)*328}'); q.issue('V%d' % u)

def mfma16(D, A, B, C):
    e(f'v_mfma_f32_32x32x16_bf16 {vr(D,16)}, {vr(A,4)}, {vr(B,4)}, {C}')
def mfma8(D, A, B, C):
    e(f'v_mfma_f32_32x32x8_bf16 {vr(D,16)}, {vr(A,2)}, {vr(B,2)}, {C}')

def cvts(p0, t0):
    e(f'v_cvt_pk_bf16_f32 {vr(P+p0)}, {vr(T+t0)}, {vr(T+t0+1)}')
    e(f'v_cvt_pk_bf16_f32 {vr(P+p0+1)}, {vr(T+t0+2)}, {vr(T+t0+3)}')
def exps(S, s0, t0):
    for i in range(4):
        e(f'v_exp_f32 {vr(T+t0+i)}, {vr(S+s0+i)}')

def a_part(q, addr, j, last=False):
    c(f'A-part tile+{j}')
    q.need('K1')
    mfma16(SB, K1, QB1, vr(CB, 16))
    if not last:
        rd_k1(q, *addr('K1', j + 1))
    cvts(6, 4)
    exps(SA, 0, 0)
    q.need('V1')
    mfma16(OB, V1, P + 4, vr(OB, 16))
    rd_v(q, 1, *addr('V', j))
    cvts(0, 0)
    exps(SA, 4, 4)
    q.need('K2')
    mfma8(SB, K2, QB2, vr(SB, 16))
    if not last:
        rd_k2(q, *addr('K2', j + 1))
    cvts(2, 4)
    exps(SA, 8, 0)
    q.need('V0')
    mfma16(OA, V0, P, vr(OA, 16))
    cvts(4, 0)
    exps(SA, 12, 4)

def b_part(q, addr, j, last=False):
    c(f'B-part tile+{j}')
    if not last:
        q.need('K1')
        mfma16(SA, K1, QA1, vr(CB, 16))
    cvts(6, 4)
    exps(SB, 0, 0)
    q.need('V1')
    mfma16(OA, V1, P + 4, vr(OA, 16))
    cvts(0, 0)
    exps(SB, 4, 4)
    if not last:
        q.need('K2')
        mfma8(SA, K2, QA2, vr(SA, 16))
    cvts(2, 4)
    exps(SB, 8, 0)
    q.need('V0')
    mfma16(OB, V0, P, vr(OB, 16))
    if not last:
        rd_v(q, 0, *addr('V', j + 1))
    cvts(4, 0)
    exps(SB, 12, 4)

K = 'standalone__qk_norm__prompt_kernel'
e('s_cmp_ge_u32 s2, 256')
e('s_cbranch_scc1 L_end')
ts()
if TIMING: e('s_memrealtime s[70:71]')
if TIMING: e('s_load_dwordx2 s[74:75], s[0:1], 40')
e(f's_load_dwordx2 s[{sQ}:{sQ+1}], s[0:1], 0')
e(f's_load_dwordx2 s[{sK}:{sK+1}], s[0:1], 8')
e(f's_load_dwordx2 s[{sV}:{sV+1}], s[0:1], 16')
e('s_load_dwordx2 s[10:11], s[0:1], 24')
e(f's_load_dwordx2 s[{sO}:{sO+1}], s[0:1], 32')
for s in (sQ, sK, sV, sO):
    e(f's_mov_b32 s{s+2}, 5242880')
    e(f's_mov_b32 s{s+3}, 0x00020000')
e('s_and_b32 s14, s2, 7')
e('s_lshr_b32 s15, s2, 5')
e('s_lshl_b32 s15, s15, 3')
e('s_add_u32 s14, s14, s15')
e('s_lshr_b32 s15, s2, 3')
e('s_and_b32 s15, s15, 3')
e(f's_mul_i32 s{sHead}, s14, 81920')
e('s_mul_i32 s15, s15, 20480')
e(f's_add_u32 s{sQoff}, s{sHead}, s15')
e(f's_mov_b32 s{sRound}, s{sHead}')
e(f's_mov_b32 s{sMask}, 0xffff0000')
e('s_and_b32 s14, s14, 31')
e('s_lshr_b32 s15, s14, 1')
e('s_lshl_b32 s15, s15, 2')
e('s_and_b32 s14, s14, 1')
e('s_lshl_b32 s14, s14, 4')
e(f'v_mul_u32_u24 {vr(gOff)}, 40, v0')
e('v_and_b32 v1, 63, v0')
e('v_and_b32 v2, 31, v0')
e('v_lshrrev_b32 v3, 5, v0')
e('s_waitcnt lgkmcnt(0)')
e('s_load_dword s12, s[10:11], s15')
load_rows(TMP + 10, sQ, sQoff)
load_rows(KS, sK, sRound)
load_rows(VS, sV, sRound)
e(f'v_mul_u32_u24 v4, {SLOT}, v3')
e('v_lshlrev_b32 v5, 4, v2')
e(f'v_add_u32 {vr(wK1)}, v4, v5')
e('v_lshlrev_b32 v5, 3, v2')
e(f'v_add3_u32 {vr(wK2)}, v4, v5, 1024'.replace('1024', '0'))
L.pop()
e(f'v_add_u32 {vr(wK2)}, v4, v5')
e(f'v_add_u32 {vr(wK2)}, 1024, {vr(wK2)}')
e('v_mul_u32_u24 v5, 40, v2')
e('v_lshrrev_b32 v6, 3, v2')
e('v_lshlrev_b32 v6, 3, v6')
e(f'v_add3_u32 {vr(wV)}, v4, v5, v6')
e(f'v_add_u32 {vr(wV)}, {VOFF}, {vr(wV)}')
e(f'v_lshlrev_b32 {vr(aK1)}, 4, v1')
e(f'v_lshlrev_b32 {vr(aK2)}, 3, v2')
e(f'v_add_u32 {vr(aK2)}, 1024, {vr(aK2)}')
e('v_lshrrev_b32 v4, 5, v1')
e('v_lshlrev_b32 v4, 2, v4')
e('v_bfe_u32 v5, v1, 2, 2')
e('v_add_u32 v4, v4, v5')
e('v_mul_u32_u24 v4, 40, v4')
e('v_and_b32 v5, 3, v1')
e('v_lshlrev_b32 v6, 3, v5')
e('v_add_u32 v6, v4, v6')
e('v_add_u32 v7, 32, v4')
e('v_mov_b32 v8, 320')
e('v_cmp_eq_u32 vcc, 0, v5')
e('s_nop 1')
e('v_cndmask_b32 v7, v8, v7, vcc')
e('v_and_b32 v5, 16, v1')
e('v_cmp_eq_u32 vcc, 0, v5')
e('s_nop 1')
e('v_cndmask_b32 v6, v7, v6, vcc')
e(f'v_add_u32 {vr(aV)}, {VOFF}, v6')
e(f'v_mov_b32 {vr(bK1)}, {vr(aK1)}')
e(f'v_mov_b32 {vr(bK2)}, {vr(aK2)}')
e(f'v_mov_b32 {vr(bV)}, {vr(aV)}')
e('v_min_u32 v4, 251, v0')
e('v_lshrrev_b32 v5, 2, v4')
e(f'v_mul_u32_u24 v5, {SLOT}, v5')
e('v_and_b32 v4, 3, v4')
e('v_mul_u32_u24 v4, 328, v4')
e(f'v_add3_u32 v4, v4, v5, {VOFF+320}'.replace(f', {VOFF+320}', ', 0'))
e(f'v_add_u32 v4, {VOFF+320}, v4')
e('v_mov_b32 v6, 0x3f80')
e('v_mov_b32 v7, 0')
e('ds_write_b64 v4, v[6:7]')
for i in range(16):
    e(f'v_mov_b32 {vr(OA+i)}, 0')
    e(f'v_mov_b32 {vr(OB+i)}, 0')
for r in list(range(T + 4, T + 8)) + [P + 4, P + 5] + list(range(V1, V1 + 4)):
    e(f'v_mov_b32 {vr(r)}, 0')
e('s_waitcnt lgkmcnt(0)')
e('s_lshr_b32 s12, s12, s14')
e(f's_lshl_b32 s{sT}, s12, 16')
e(f's_and_b32 s{sAbsT}, s{sT}, 0x7fffffff')
e(f's_cmp_le_u32 s{sAbsT}, 0x41300000')
e(f's_cselect_b32 s{sPass}, 1, 0')
e(f's_and_b32 s13, s{sT}, 0x80000000')
e('s_or_b32 s13, s13, 0x3f800000')
e(f'v_mov_b32 {vr(vT)}, s{sT}')
e(f'v_mul_f32 {vr(vT)}, 0x3fb8aa3b, {vr(vT)}')
e(f'v_mul_f32 v4, |{vr(vT)}|, -1.0')
e('v_mul_f32 v4, 0x3f8147ae, v4')
for i in range(16):
    e(f'v_mov_b32 {vr(CB+i)}, v4')
e(f's_cmp_eq_u32 s{sPass}, 1')
e('s_cbranch_scc1 L_qprep')
e(f'v_mov_b32 {vr(vT)}, s13')
lab('L_qprep')
ts()
QX = TMP + 10
e('s_waitcnt vmcnt(6)')
norm(QX, vT)
Z0, Z1 = TMP + 20, TMP + 21
e(f'v_mov_b32 {vr(Z0)}, 0')
e(f'v_mov_b32 {vr(Z1)}, 0')
e('s_nop 1')
for r in range(4):
    e(f'v_permlane32_swap_b32 {vr(QX+r)}, {vr(QX+4+r)}')
e(f'v_permlane32_swap_b32 {vr(QX+8)}, {vr(Z0)}')
e(f'v_permlane32_swap_b32 {vr(QX+9)}, {vr(Z1)}')
e('s_nop 1')
for r in range(4):
    e(f'v_mov_b32 {vr(QA1+r)}, {vr(QX+r)}')
    e(f'v_mov_b32 {vr(QB1+r)}, {vr(QX+4+r)}')
e(f'v_mov_b32 {vr(QA2)}, {vr(QX+8)}')
e(f'v_mov_b32 {vr(QA2+1)}, {vr(QX+9)}')
e(f'v_mov_b32 {vr(QB2)}, {vr(Z0)}')
e(f'v_mov_b32 {vr(QB2+1)}, {vr(Z1)}')
e(f's_cmp_eq_u32 s{sPass}, 0')
e('s_cbranch_scc1 L_slow')
e(f's_mov_b32 s{sIter}, -3')
lab('L_prep')
e('s_waitcnt vmcnt(0)')
norm(KS)
e(f'v_subrev_u32 {vr(TMP)}, {RING}, {vr(wK1)}')
e(f'v_subrev_u32 {vr(TMP+1)}, {RING}, {vr(wK2)}')
e(f'v_subrev_u32 {vr(TMP+2)}, {RING}, {vr(wV)}')
e(f'v_min_u32 {vr(TMP)}, {vr(TMP)}, {vr(wK1)}')
e(f'v_min_u32 {vr(TMP+1)}, {vr(TMP+1)}, {vr(wK2)}')
e(f'v_min_u32 {vr(TMP+2)}, {vr(TMP+2)}, {vr(wV)}')
write_k(TMP, TMP + 1)
write_v(TMP + 2)
e(f'v_add_u32 {vr(wK1)}, {16*SLOT}, {vr(wK1)}')
e(f'v_add_u32 {vr(wK2)}, {16*SLOT}, {vr(wK2)}')
e(f'v_add_u32 {vr(wV)}, {16*SLOT}, {vr(wV)}')
e(f's_add_u32 s{sRound}, s{sRound}, 20480')
e(f's_cmp_ge_i32 s{sIter}, 16')
e('s_cbranch_scc1 L_noload')
e('s_waitcnt lgkmcnt(0)')
load_rows(KS, sK, sRound)
load_rows(VS, sV, sRound)
lab('L_noload')
e('s_waitcnt lgkmcnt(0)')
e(f's_cmp_ge_i32 s{sIter}, 0')
e('s_cbranch_scc1 L_loop')
ts()
e('s_barrier')
ts()
e(f's_mov_b32 s{sIter}, 0')
q = Q()
rd_k1(q, aK1, 0)
rd_k2(q, aK2, 0)
rd_v(q, 0, aV, 0)
q.need('K1')
mfma16(SA, K1, QA1, vr(CB, 16))
q.need('K2')
mfma8(SA, K2, QA2, vr(SA, 16))
e('s_nop 7')
e('s_nop 7')
def addr_loop(stream, t):
    return ({'K1': aK1, 'K2': aK2, 'V': aV}[stream], t * SLOT)
e('.p2align 6')
lab('L_loop')
q = Q(['V0', 'V0'])
a_part(q, addr_loop, 0)
b_part(q, addr_loop, 0)
a_part(q, addr_loop, 1)
b_part(q, addr_loop, 1)
assert q.q == ['V0', 'V0'], q.q
e(f'v_add_u32 {vr(aK1)}, {2*SLOT}, {vr(aK1)}')
e(f'v_add_u32 {vr(aK2)}, {2*SLOT}, {vr(aK2)}')
e(f'v_add_u32 {vr(aV)}, {2*SLOT}, {vr(aV)}')
e(f's_add_u32 s{sIter}, s{sIter}, 1')
e(f's_cmp_eq_u32 s{sIter}, 31')
e('s_cbranch_scc1 L_last')
e(f's_and_b32 s12, s{sIter}, 7')
e('s_cmp_eq_u32 s12, 5')
e('s_cbranch_scc1 L_maybe_prep')
e('s_cmp_lg_u32 s12, 7')
e('s_cbranch_scc1 L_loop')
e('s_barrier')
e('s_branch L_loop')
lab('L_maybe_prep')
e(f's_cmp_lt_u32 s{sIter}, 24')
e('s_cbranch_scc1 L_prep')
e('s_branch L_loop')
lab('L_last')
ts()
def addr_last(stream, t):
    if t == 0:
        return ({'K1': aK1, 'K2': aK2, 'V': aV}[stream], 0)
    assert t == 1
    return ({'K1': bK1, 'K2': bK2, 'V': bV}[stream], 0)
q = Q(['V0', 'V0'])
a_part(q, addr_last, 0)
b_part(q, addr_last, 0)
a_part(q, addr_last, 1, last=True)
b_part(q, addr_last, 1, last=True)
cvts(6, 4)
e('s_nop 1')
mfma16(OB, V1, P + 4, vr(OB, 16))
lab('L_epi')
if int(os.environ.get('DELAY','0')):
    e(f"s_mov_b32 s12, {int(os.environ.get('DELAY','0'))}")
    lab('L_delay')
    for _ in range(8): e('v_exp_f32 v1, v1')
    e('s_sub_u32 s12, s12, 1')
    e('s_cmp_lg_u32 s12, 0')
    e('s_cbranch_scc1 L_delay')
ts()
e('s_nop 7')
e('s_nop 7')
W = TMP
def epi(O, Wb):
    l0, l1 = Wb + 6, Wb + 7
    e(f'v_mov_b32 {vr(l0)}, {vr(O+8)}')
    e(f'v_mov_b32 {vr(l1)}, {vr(O+8)}')
    e('s_nop 1')
    e(f'v_permlane32_swap_b32 {vr(l0)}, {vr(l1)}')
    e('s_nop 1')
    e(f'v_rcp_f32 {vr(l1)}, {vr(l1)}')
    e('s_nop 0')
    for i in range(12):
        e(f'v_mul_f32 {vr(O+i)}, {vr(O+i)}, {vr(l1)}')
    for i in range(6):
        e(f'v_cvt_pk_bf16_f32 {vr(Wb+i)}, {vr(O+2*i)}, {vr(O+2*i+1)}')
    e('s_nop 1')
    e(f'v_permlane32_swap_b32 {vr(Wb)}, {vr(Wb+2)}')
    e(f'v_permlane32_swap_b32 {vr(Wb+1)}, {vr(Wb+3)}')
WA, WB_ = TMP, TMP + 8
epi(OA, WA)
epi(OB, WB_)
e(f'v_permlane32_swap_b32 {vr(WA+4)}, {vr(WB_+4)}')
e(f'v_permlane32_swap_b32 {vr(WA+5)}, {vr(WB_+5)}')
e('v_and_b32 v1, 32, v0')
e('v_mul_u32_u24 v2, 40, v1')
e('v_lshrrev_b32 v1, 1, v1')
e(f'v_sub_u32 v3, {vr(gOff)}, v2')
e('v_add_u32 v3, v3, v1')
e('s_nop 0')
e(f'buffer_store_dwordx4 {vr(WA,4)}, v3, s[{sO}:{sO+3}], s{sQoff} offen')
e(f'buffer_store_dwordx4 {vr(WB_,4)}, v3, s[{sO}:{sO+3}], s{sQoff} offen offset:1280')
e(f'buffer_store_dwordx2 {vr(WA+4,2)}, {vr(gOff)}, s[{sO}:{sO+3}], s{sQoff} offen offset:32')
if TIMING:
    e('s_waitcnt vmcnt(0)')
    ts()
    e('s_memrealtime s[72:73]')
    e('s_waitcnt lgkmcnt(0)')
    e('s_cmp_eq_u32 s2, 0')
    e('s_cselect_b32 s76, 0, 128')
    e('s_cmp_eq_u32 s2, 0')
    e('s_cbranch_scc1 L_dbg')
    e('s_cmp_eq_u32 s2, 200')
    e('s_cbranch_scc0 L_end')
    lab('L_dbg')
    e('v_cmp_eq_u32 vcc, 0, v0')
    e('v_mov_b32 v1, s76')
    e('s_and_saveexec_b64 s[78:79], vcc')
    e('s_cbranch_execz L_end')
    for i in range(_ts[0]):
        e(f'v_mov_b32 v2, s{50+2*i}')
        e(f'global_store_dword v1, v2, s[74:75] offset:{4*i}')
    e('v_mov_b32 v2, s70')
    e(f'global_store_dword v1, v2, s[74:75] offset:{4*_ts[0]}')
    e('v_mov_b32 v2, s72')
    e(f'global_store_dword v1, v2, s[74:75] offset:{4*_ts[0]+4}')
e('s_endpgm')
lab('L_slow')
e(f'v_mov_b32 {vr(mA)}, 0xff800000')
e(f'v_mov_b32 {vr(mB)}, 0xff800000')
e(f's_mov_b32 s{sPass}, 0')
lab('L_s_pass')
e(f's_mov_b32 s{sRound}, s{sHead}')
e(f's_mov_b32 s{sIter}, 0')
lab('L_s_round')
e('s_waitcnt vmcnt(0) lgkmcnt(0)')
e('s_barrier')
load_rows(KS, sK, sRound)
load_rows(VS, sV, sRound)
e('s_waitcnt vmcnt(0)')
norm(KS)
write_k(wK1, wK2)
write_v(wV)
e('s_waitcnt lgkmcnt(0)')
e('s_barrier')
e(f'v_mov_b32 {vr(aK1)}, {vr(bK1)}')
e(f'v_mov_b32 {vr(aK2)}, {vr(bK2)}')
e(f'v_mov_b32 {vr(aV)}, {vr(bV)}')
e(f's_mov_b32 s{sTau}, 0')
lab('L_s_tile')
q = Q()
rd_k1(q, aK1, 0)
rd_k2(q, aK2, 0)
rd_v(q, 0, aV, 0)
rd_v(q, 1, aV, 0)
e('s_waitcnt lgkmcnt(0)')
mfma16(SA, K1, QA1, '0')
mfma16(SB, K1, QB1, '0')
mfma8(SA, K2, QA2, vr(SA, 16))
mfma8(SB, K2, QB2, vr(SB, 16))
e('s_nop 7')
e('s_nop 7')
e(f's_cmp_eq_u32 s{sPass}, 1')
e('s_cbranch_scc1 L_s_pv')
for i in range(0, 16, 2):
    e(f'v_max3_f32 {vr(mA)}, {vr(SA+i)}, {vr(SA+i+1)}, {vr(mA)}')
    e(f'v_max3_f32 {vr(mB)}, {vr(SB+i)}, {vr(SB+i+1)}, {vr(mB)}')
e('s_branch L_s_next')
lab('L_s_pv')
for (S, O, m) in ((SA, OA, mA), (SB, OB, mB)):
    for i in range(16):
        e(f'v_sub_f32 {vr(S+i)}, {vr(S+i)}, {vr(m)}')
        e(f'v_mul_f32 {vr(S+i)}, s{sAbsT}, {vr(S+i)}')
        e(f'v_mul_f32 {vr(S+i)}, 0x3fb8aa3b, {vr(S+i)}')
        e(f'v_exp_f32 {vr(S+i)}, {vr(S+i)}')
    e('s_nop 0')
    for i in range(8):
        e(f'v_cvt_pk_bf16_f32 {vr(P+i)}, {vr(S+2*i)}, {vr(S+2*i+1)}')
    e('s_nop 1')
    mfma16(O, V0, P, vr(O, 16))
    mfma16(O, V1, P + 4, vr(O, 16))
    e('s_nop 7')
lab('L_s_next')
e(f'v_add_u32 {vr(aK1)}, {SLOT}, {vr(aK1)}')
e(f'v_add_u32 {vr(aK2)}, {SLOT}, {vr(aK2)}')
e(f'v_add_u32 {vr(aV)}, {SLOT}, {vr(aV)}')
e(f's_add_u32 s{sTau}, s{sTau}, 1')
e(f's_cmp_lt_u32 s{sTau}, 16')
e('s_cbranch_scc1 L_s_tile')
e(f's_add_u32 s{sRound}, s{sRound}, 20480')
e(f's_add_u32 s{sIter}, s{sIter}, 1')
e(f's_cmp_lt_u32 s{sIter}, 4')
e('s_cbranch_scc1 L_s_round')
e(f's_cmp_eq_u32 s{sPass}, 1')
e('s_cbranch_scc1 L_epi')
for m in (mA, mB):
    e(f'v_mov_b32 {vr(TMP)}, {vr(m)}')
    e(f'v_mov_b32 {vr(TMP+1)}, {vr(m)}')
    e('s_nop 1')
    e(f'v_permlane32_swap_b32 {vr(TMP)}, {vr(TMP+1)}')
    e('s_nop 1')
    e(f'v_max_f32 {vr(m)}, {vr(TMP)}, {vr(TMP+1)}')
e(f's_mov_b32 s{sPass}, 1')
e('s_branch L_s_pass')
lab('L_end')

hdr = PRE.replace('; @launch grid=(10240,1,1) block=(256,1,1) lds=0',
                  f'; @launch grid=(256,1,1) block=(512,1,1) lds={LDS}')
post = POST.replace('.amdhsa_next_free_vgpr 256', f'.amdhsa_next_free_vgpr {NV}').replace(
    '.amdhsa_accum_offset 256', f'.amdhsa_accum_offset {NV}')
open(OUT, 'w').write(hdr + K + ':\n' + '\n'.join(L) + '\ns_endpgm\n' + post)
print('wrote', OUT, len(L), 'lines')
```

```python
import sys, subprocess, os
HEAD = """
.amdgcn_target "amdgcn-amd-amdhsa--gfx950"
.text
.globl mb
.p2align 8
.type mb,@function
mb:
  s_load_dwordx2 s[4:5], s[0:1], 0
  s_load_dwordx2 s[6:7], s[0:1], 8
  v_lshrrev_b32 v1, 6, v0
  s_nop 1
  v_readfirstlane_b32 s8, v1
  v_lshlrev_b32 v2, 2, v0
  s_waitcnt lgkmcnt(0)
{init}
  s_mov_b32 s20, {iters}
  s_waitcnt vmcnt(0) lgkmcnt(0)
  s_barrier
  s_memtime s[10:11]
  s_waitcnt lgkmcnt(0)
.p2align 6
L_loop:
{body}
  s_sub_u32 s20, s20, 1
  s_cmp_lg_u32 s20, 0
  s_cbranch_scc1 L_loop
  s_nop 15
  s_nop 15
  s_memtime s[12:13]
  s_waitcnt lgkmcnt(0)
  s_mul_i32 s14, s2, {nwaves}
  s_add_u32 s14, s14, s8
  s_lshl_b32 s14, s14, 4
  v_mov_b32 v4, s10
  v_mov_b32 v5, s11
  v_mov_b32 v6, s12
  v_mov_b32 v7, s13
  v_mov_b32 v8, s14
  v_cmp_eq_u32 vcc, 0, v0
  v_and_b32 v9, 63, v0
  v_cmp_eq_u32 vcc, 0, v9
  s_and_saveexec_b64 s[16:17], vcc
  global_store_dwordx4 v8, v[4:7], s[6:7]
  s_waitcnt vmcnt(0)
  s_endpgm
.section .rodata,"a"
.p2align 6
.amdhsa_kernel mb
  .amdhsa_next_free_vgpr {nvgpr}
  .amdhsa_next_free_sgpr 64
  .amdhsa_accum_offset {nvgpr}
  .amdhsa_group_segment_fixed_size 0
  .amdhsa_kernarg_size 16
  .amdhsa_user_sgpr_count 2
  .amdhsa_user_sgpr_kernarg_segment_ptr 1
  .amdhsa_system_sgpr_workgroup_id_x 1
.end_amdhsa_kernel
.amdgpu_metadata
---
amdhsa.version: [1, 2]
amdhsa.kernels:
  - .name: mb
    .symbol: mb.kd
    .kernarg_segment_size: 16
    .kernarg_segment_align: 8
    .group_segment_fixed_size: 0
    .private_segment_fixed_size: 0
    .wavefront_size: 64
    .sgpr_count: 64
    .vgpr_count: {nvgpr}
    .max_flat_workgroup_size: 1024
    .args:
      - {{.name: a, .size: 8, .offset: 0, .value_kind: global_buffer, .address_space: global}}
      - {{.name: b, .size: 8, .offset: 8, .value_kind: global_buffer, .address_space: global}}
...
.end_amdgpu_metadata
"""
def build(name, body, init="", iters=1000, nwaves=4, nvgpr=128):
    if not init:
        init = "\n".join(f"  v_mov_b32 v{i}, 0.5" for i in range(10, nvgpr))
    s = HEAD.format(init=init, body=body, iters=iters, nwaves=nwaves, nvgpr=nvgpr)
    open(name + ".s", "w").write(s)
    r = subprocess.run(["clang", "-x", "assembler", "-target", "amdgcn-amd-amdhsa", "-mcpu=gfx950", name + ".s", "-o", name + ".co"], capture_output=True, text=True)
    if r.returncode != 0:
        print(r.stderr[:3000]); raise SystemExit(1)
```

```python
import sys, os

OUT = sys.argv[1] if len(sys.argv) > 1 else 'standalone__qk_norm__prompt.s'
REF = open('standalone__qk_norm__prompt.s.ref').read()
PRE, REST = REF.split('standalone__qk_norm__prompt_kernel:\n', 1)
_, POST = REST.split('s_endpgm\n', 1)

SLOT = 2592
VOFF = 1280
BUF = 16 * SLOT
QX = 3 * BUF
LDS = QX + 8 * 3072
EX = BUF

TIMING = int(os.environ.get('TIMING', '0'))
PRIO = os.environ.get('PRIO', '0:3,6:2,10:1,13:0')
PREPAT = int(os.environ.get('PREPAT', '3'))
NOBAR = int(os.environ.get('NOBAR', '0'))

L = []
_ts = [0]
def ts():
    if TIMING:
        i = _ts[0]; _ts[0] += 1
        L.append(f'    s_memtime s[{50+2*i}:{51+2*i}]')
        L.append(f'    s_waitcnt lgkmcnt(0)')
def e(s): L.append('    ' + s)
def lab(s): L.append(s + ':')
def c(s): L.append('    ; ' + s)
def vr(b, n=1):
    return 'v%d' % b if n == 1 else 'v[%d:%d]' % (b, b + n - 1)

SA, SB, OA, OB = 0, 16, 32, 48
QA1, QB1, QA2, QB2 = 64, 68, 72, 74
K1, K2 = 76, 80
V0, V1 = 82, 86
aK1, aK2, aV = 90, 91, 92
w0, w1, gOff = 93, 94, 95
X = 96
TMP = 106
mA, mB, vT = 116, 117, 118
NV = 120

sR, sQ, sO = 20, 24, 28
sHead, sQoff, sRound, sRnd, sMask, sT, sAbsT, sFast = 16, 17, 18, 19, 36, 37, 38, 39
sRole, sInc, sWave, sTau, sPass = 40, 41, 42, 43, 44
sBp, sBm = 45, 46

def norm(Xr, scale=None):
    a, b = TMP, TMP + 1
    e(f'v_dot2_f32_bf16 {vr(a)}, {vr(Xr)}, {vr(Xr)}, 0')
    e(f'v_dot2_f32_bf16 {vr(b)}, {vr(Xr+1)}, {vr(Xr+1)}, 0')
    for i in range(2, 10):
        r = a if i % 2 == 0 else b
        e(f'v_dot2_f32_bf16 {vr(r)}, {vr(Xr+i)}, {vr(Xr+i)}, {vr(r)}')
    e('s_nop 2')
    e(f'v_add_f32 {vr(a)}, {vr(a)}, {vr(b)}')
    e(f'v_sqrt_f32 {vr(a)}, {vr(a)}')
    e('s_nop 0')
    e(f'v_add_f32 {vr(a)}, 0x358637bd, {vr(a)}')
    e(f'v_rcp_f32 {vr(a)}, {vr(a)}')
    e('s_nop 0')
    if scale is not None:
        e(f'v_mul_f32 {vr(a)}, {vr(a)}, {vr(scale)}')
    for i in range(10):
        lo, hi = TMP + 2 + 2 * (i % 4), TMP + 3 + 2 * (i % 4)
        e(f'v_lshlrev_b32 {vr(lo)}, 16, {vr(Xr+i)}')
        e(f'v_and_b32 {vr(hi)}, s{sMask}, {vr(Xr+i)}')
        e(f'v_mul_f32 {vr(lo)}, {vr(lo)}, {vr(a)}')
        e(f'v_mul_f32 {vr(hi)}, {vr(hi)}, {vr(a)}')
        e(f'v_cvt_pk_bf16_f32 {vr(Xr+i)}, {vr(lo)}, {vr(hi)}')

def load_rows(Xr, srd, soff):
    e(f'buffer_load_dwordx4 {vr(Xr,4)}, {vr(gOff)}, s[{srd}:{srd+3}], s{soff} offen')
    e(f'buffer_load_dwordx4 {vr(Xr+4,4)}, {vr(gOff)}, s[{srd}:{srd+3}], s{soff} offen offset:16')
    e(f'buffer_load_dwordx2 {vr(Xr+8,2)}, {vr(gOff)}, s[{srd}:{srd+3}], s{soff} offen offset:32')

def write_k(a1, a2):
    e(f'ds_write_b128 {vr(a1)}, {vr(X,4)}')
    e(f'ds_write_b128 {vr(a1)}, {vr(X+4,4)} offset:512')
    e(f'ds_write_b64 {vr(a2)}, {vr(X+8,2)}')

def write_v(a):
    e(f'ds_write2_b64 {vr(a)}, {vr(X,2)}, {vr(X+2,2)} offset0:0 offset1:1')
    e(f'ds_write2_b64 {vr(a)}, {vr(X+4,2)}, {vr(X+6,2)} offset0:2 offset1:3')
    e(f'ds_write_b64 {vr(a)}, {vr(X+8,2)} offset:32')

class Q:
    def __init__(self, init=()):
        self.q = list(init)
    def issue(self, tag):
        self.q.append(tag)
    def need(self, tag):
        if tag in self.q:
            last = max(i for i, t in enumerate(self.q) if t == tag)
            n = len(self.q) - 1 - last
            e(f's_waitcnt lgkmcnt({n})')
            self.q = self.q[last + 1:]

def rd_k1(q, off):
    e(f'ds_read_b128 {vr(K1,4)}, {vr(aK1)} offset:{off}'); q.issue('K1')
def rd_k2(q, off):
    e(f'ds_read_b64 {vr(K2,2)}, {vr(aK2)} offset:{off}'); q.issue('K2')
def rd_v(q, u, off):
    R = V0 if u == 0 else V1
    for x in range(2):
        e(f'ds_read_b64_tr_b16 {vr(R+2*x,2)}, {vr(aV)} offset:{off + (2*u+x)*328}'); q.issue('V%d' % u)

def mfma16(D, A, B, C):
    e(f'v_mfma_f32_32x32x16_bf16 {vr(D,16)}, {vr(A,4)}, {vr(B,4)}, {C}')
def mfma8(D, A, B, C):
    e(f'v_mfma_f32_32x32x8_bf16 {vr(D,16)}, {vr(A,2)}, {vr(B,2)}, {C}')

def cvts(S, g):
    d = S + (0, 2, 8, 10)[g]
    e(f'v_cvt_pk_bf16_f32 {vr(d)}, {vr(S+4*g)}, {vr(S+4*g+1)}')
    e(f'v_cvt_pk_bf16_f32 {vr(d+1)}, {vr(S+4*g+2)}, {vr(S+4*g+3)}')
def exps(S, g, lo=0, hi=4):
    for i in range(lo, hi):
        e(f'v_exp_f32 {vr(S+4*g+i)}, {vr(S+4*g+i)}')

NT = 8
prio_tab = dict((int(a.split(':')[0]), int(a.split(':')[1])) for a in PRIO.split(',') if a)
def setprio(pos):
    if pos in prio_tab:
        e(f's_setprio {prio_tab[pos]}')

def part(q, j, which):
    last = (j == NT - 1)
    if which == 'a':
        S, So, O, Oo = SA, SB, OA, OB
        Q1o, Q2o = QB1, QB2
    else:
        S, So, O, Oo = SB, SA, OB, OA
        Q1o, Q2o = QA1, QA2
    c(f'{which}-part tile {j}')
    cvts(So, 3)
    exps(S, 0, 0, 2)
    q.need('V1')
    mfma16(Oo, V1, So + 8, vr(Oo, 16))
    if which == 'a':
        rd_v(q, 1, j * SLOT)
    exps(S, 0, 2, 4)
    if which == 'a' and last:
        barrier_point()
        e(f'v_add_u32 {vr(aK1)}, s{sInc}, {vr(aK1)}')
        e(f'v_add_u32 {vr(aK2)}, s{sInc}, {vr(aK2)}')
    q.need('K1')
    mfma16(So, K1, Q1o, '0')
    if which == 'a':
        rd_k1(q, 0 if last else (j + 1) * SLOT)
    cvts(S, 0)
    exps(S, 1)
    q.need('K2')
    mfma8(So, K2, Q2o, vr(So, 16))
    if which == 'a':
        rd_k2(q, 0 if last else (j + 1) * SLOT)
    cvts(S, 1)
    exps(S, 2)
    q.need('V0')
    mfma16(O, V0, S, vr(O, 16))
    if which == 'b':
        if last:
            e(f'v_add_u32 {vr(aV)}, s{sInc}, {vr(aV)}')
        rd_v(q, 0, 0 if last else (j + 1) * SLOT)
    cvts(S, 2)
    exps(S, 3)

def barrier_point():
    if NOBAR: return
    e(f's_cmp_eq_u32 s{sRnd}, 3')
    e('s_cbranch_scc1 L_nobar')
    e('s_barrier')
    lab('L_nobar')
    setprio(0)

K = 'standalone__qk_norm__prompt_kernel'
e('s_cmp_ge_u32 s2, 256')
e('s_cbranch_scc1 L_end')
ts()
if TIMING: e('s_memrealtime s[70:71]')
e('s_load_dwordx8 s[4:11], s[0:1], 0')
e('s_load_dwordx2 s[12:13], s[0:1], 32')
if TIMING: e('s_load_dwordx2 s[74:75], s[0:1], 40')
e('v_lshrrev_b32 v1, 6, v0')
e('s_and_b32 s14, s2, 7')
e(f'v_readfirstlane_b32 s{sWave}, v1')
e('s_lshr_b32 s15, s2, 5')
e('s_lshl_b32 s15, s15, 3')
e('s_add_u32 s14, s14, s15')
e('s_lshr_b32 s15, s2, 3')
e('s_and_b32 s15, s15, 3')
e(f's_mul_i32 s{sHead}, s14, 81920')
e('s_mul_i32 s15, s15, 20480')
e(f's_add_u32 s{sQoff}, s{sHead}, s15')
e(f's_mov_b32 s{sRound}, s{sHead}')
e(f's_mov_b32 s{sMask}, 0xffff0000')
e(f's_mov_b32 s{sBp}, {BUF}')
e(f's_mov_b32 s{sBm}, {(-2*BUF) & 0xffffffff}')
e(f's_lshr_b32 s{sRole}, s{sWave}, 3')
e('s_and_b32 s14, s14, 31')
e('s_lshr_b32 s15, s14, 1')
e('s_lshl_b32 s15, s15, 2')
e('s_and_b32 s14, s14, 1')
e('s_lshl_b32 s14, s14, 4')
e('v_and_b32 v4, 511, v0')
e(f'v_mul_u32_u24 {vr(gOff)}, 40, v4')
e('v_and_b32 v1, 63, v0')
e('v_and_b32 v2, 31, v0')
e('v_lshrrev_b32 v3, 5, v4')
for s in (sR, sQ, sO):
    e(f's_mov_b32 s{s+2}, 5242880')
    e(f's_mov_b32 s{s+3}, 0x00020000')
e(f's_cmp_eq_u32 s{sRole}, 0')
e('s_waitcnt lgkmcnt(0)')
e('s_load_dword s3, s[10:11], s15')
e(f's_cselect_b32 s{sR}, s6, s8')
e(f's_cselect_b32 s{sR+1}, s7, s9')
e(f's_mov_b32 s{sQ}, s4')
e(f's_mov_b32 s{sQ+1}, s5')
e(f's_mov_b32 s{sO}, s12')
e(f's_mov_b32 s{sO+1}, s13')
Y = SB
e('s_cbranch_scc1 L_noq')
load_rows(Y, sQ, sQoff)
lab('L_noq')
load_rows(X, sR, sRound)
e(f'v_mul_u32_u24 v4, {SLOT}, v3')
e(f's_cmp_eq_u32 s{sRole}, 0')
e('s_cbranch_scc0 L_wv')
e('v_lshlrev_b32 v5, 4, v2')
e(f'v_add_u32 {vr(w0)}, v4, v5')
e('v_lshlrev_b32 v5, 3, v2')
e(f'v_add_u32 {vr(w1)}, v4, v5')
e(f'v_add_u32 {vr(w1)}, 1024, {vr(w1)}')
e('s_branch L_wdone')
lab('L_wv')
e('v_mul_u32_u24 v5, 40, v2')
e('v_lshrrev_b32 v6, 3, v2')
e('v_lshlrev_b32 v6, 3, v6')
e(f'v_add3_u32 {vr(w0)}, v4, v5, v6')
e(f'v_add_u32 {vr(w0)}, {VOFF}, {vr(w0)}')
e(f'v_mov_b32 {vr(w1)}, 0')
lab('L_wdone')
e(f's_mul_i32 s15, s{sRole}, {8*SLOT}')
e(f'v_lshlrev_b32 {vr(aK1)}, 4, v1')
e(f'v_add_u32 {vr(aK1)}, s15, {vr(aK1)}')
e(f'v_lshlrev_b32 {vr(aK2)}, 3, v2')
e(f'v_add_u32 {vr(aK2)}, 1024, {vr(aK2)}')
e(f'v_mov_b32 v8, {VOFF+320}')
e('v_cmp_gt_u32 vcc, 32, v1')
e('s_nop 1')
e(f'v_cndmask_b32 {vr(aK2)}, v8, {vr(aK2)}, vcc')
e(f'v_add_u32 {vr(aK2)}, s15, {vr(aK2)}')
e('v_lshrrev_b32 v4, 5, v1')
e('v_lshlrev_b32 v4, 2, v4')
e('v_bfe_u32 v5, v1, 2, 2')
e('v_add_u32 v4, v4, v5')
e('v_mul_u32_u24 v4, 40, v4')
e('v_and_b32 v5, 3, v1')
e('v_lshlrev_b32 v6, 3, v5')
e('v_add_u32 v6, v4, v6')
e('v_add_u32 v7, 32, v4')
e('v_mov_b32 v8, 320')
e('v_cmp_eq_u32 vcc, 0, v5')
e('s_nop 1')
e('v_cndmask_b32 v7, v8, v7, vcc')
e('v_and_b32 v5, 16, v1')
e('v_cmp_eq_u32 vcc, 0, v5')
e('s_nop 1')
e('v_cndmask_b32 v6, v7, v6, vcc')
e(f'v_add_u32 {vr(aV)}, {VOFF}, v6')
e(f'v_add_u32 {vr(aV)}, s15, {vr(aV)}')
e('v_min_u32 v4, 191, v0')
e('v_lshrrev_b32 v5, 2, v4')
e(f'v_mul_u32_u24 v5, {SLOT}, v5')
e('v_and_b32 v4, 3, v4')
e('v_mul_u32_u24 v4, 328, v4')
e('v_add_u32 v4, v4, v5')
e(f'v_add_u32 v4, {VOFF+320}, v4')
e('v_mov_b32 v6, 0x3f80')
e('v_mov_b32 v7, 0')
e('ds_write_b64 v4, v[6:7]')
e(f's_and_b32 s15, s{sWave}, 7')
e('s_mul_i32 s15, s15, 3072')
e(f's_add_u32 s15, s15, {QX}')
e('v_lshlrev_b32 v9, 4, v1')
e('v_add_u32 v9, s15, v9')
e('v_lshlrev_b32 v10, 3, v1')
e('v_add_u32 v10, s15, v10')
e('v_add_u32 v10, 2048, v10')
for i in range(16):
    e(f'v_mov_b32 {vr(OA+i)}, 0')
    e(f'v_mov_b32 {vr(OB+i)}, 0')
for r in range(V1, V1 + 4):
    e(f'v_mov_b32 {vr(r)}, 0')
e('s_waitcnt lgkmcnt(0)')
e('s_lshr_b32 s3, s3, s14')
e(f's_lshl_b32 s{sT}, s3, 16')
e(f's_and_b32 s{sAbsT}, s{sT}, 0x7fffffff')
e(f's_cmp_le_u32 s{sAbsT}, 0x41300000')
e(f's_cselect_b32 s{sFast}, 1, 0')
ts()
e(f's_cmp_eq_u32 s{sRole}, 0')
e('s_cbranch_scc1 L_prep0k')
e(f's_and_b32 s13, s{sT}, 0x80000000')
e('s_or_b32 s13, s13, 0x3f800000')
e(f'v_mov_b32 {vr(vT)}, s{sT}')
e(f'v_mul_f32 {vr(vT)}, 0x3fb8aa3b, {vr(vT)}')
e(f'v_mul_f32 v4, |{vr(vT)}|, -1.0')
e('v_mul_f32 v4, 0x3f8147ae, v4')
e('v_lshrrev_b32 v11, 16, v4')
e('v_mov_b32 v12, 0')
e(f's_cmp_eq_u32 s{sFast}, 1')
e('s_cbranch_scc1 L_qprep')
e(f'v_mov_b32 {vr(vT)}, s13')
e('v_mov_b32 v11, 0')
lab('L_qprep')
e('s_waitcnt vmcnt(3)')
norm(Y, vT)
e('s_nop 1')
for r in range(4):
    e(f'v_permlane32_swap_b32 {vr(Y+r)}, {vr(Y+4+r)}')
e(f'v_permlane32_swap_b32 {vr(Y+8)}, v11')
e(f'v_permlane32_swap_b32 {vr(Y+9)}, v12')
e('s_nop 1')
e(f'ds_write_b128 v9, {vr(Y,4)}')
e(f'ds_write_b128 v9, {vr(Y+4,4)} offset:1024')
e(f'ds_write_b64 v10, {vr(Y+8,2)}')
e('v_mov_b32 v13, v11')
e('v_mov_b32 v14, v11')
e('v_mov_b32 v15, v12')
e('ds_write_b64 v10, v[14:15] offset:512')
e('s_waitcnt vmcnt(0)')
write_v(w0)
e('s_branch L_prep0done')
lab('L_prep0k')
e('s_waitcnt vmcnt(0)')
norm(X)
write_k(w0, w1)
lab('L_prep0done')
e(f'v_add_u32 {vr(w0)}, {BUF}, {vr(w0)}')
e(f'v_add_u32 {vr(w1)}, {BUF}, {vr(w1)}')
e(f's_add_u32 s{sRound}, s{sRound}, 20480')
e('s_waitcnt lgkmcnt(0)')
load_rows(X, sR, sRound)
for i in range(8, 16):
    e(f'v_mov_b32 {vr(SB+i)}, 0')
e(f's_lshl_b32 s15, s{sRole}, 10')
e('v_add_u32 v11, s15, v9')
e('s_xor_b32 s15, s15, 1024')
e('v_add_u32 v12, s15, v9')
e(f's_lshl_b32 s15, s{sRole}, 9')
e('v_add_u32 v13, s15, v10')
e('s_xor_b32 s15, s15, 512')
e('v_add_u32 v14, s15, v10')
ts()
e('s_barrier')
ts()
e(f'ds_read_b128 {vr(QA1,4)}, v11')
e(f'ds_read_b64 {vr(QA2,2)}, v13')
e(f'ds_read_b128 {vr(QB1,4)}, v12')
e(f'ds_read_b64 {vr(QB2,2)}, v14')
e(f's_cmp_eq_u32 s{sFast}, 0')
e('s_cbranch_scc1 L_slow')
q = Q()
rd_k1(q, 0)
rd_k2(q, 0)
rd_v(q, 0, 0)
e(f's_mov_b32 s{sRnd}, 0')
e(f's_mov_b32 s{sInc}, {BUF}')
q.need('K1')
mfma16(SA, K1, QA1, '0')
q.need('K2')
mfma8(SA, K2, QA2, vr(SA, 16))
setprio(0)
e('s_nop 7')
e('s_nop 7')
e('.p2align 6')
lab('L_loop')
q = Q(['V0', 'V0'])
for j in range(NT):
    if j == PREPAT:
        e(f's_cmp_eq_u32 s{sRnd}, 3')
        e('s_cbranch_scc1 L_noprep')
        e('s_waitcnt vmcnt(0)')
        e(f's_cmp_eq_u32 s{sRole}, 0')
        e('s_cbranch_scc0 L_pv')
        norm(X)
        write_k(w0, w1)
        e('s_branch L_pdone')
        lab('L_pv')
        write_v(w0)
        lab('L_pdone')
        e(f's_cmp_eq_u32 s{sRnd}, 1')
        e(f's_cselect_b32 s15, s{sBm}, s{sBp}')
        e(f'v_add_u32 {vr(w0)}, s15, {vr(w0)}')
        e(f'v_add_u32 {vr(w1)}, s15, {vr(w1)}')
        e(f's_add_u32 s{sRound}, s{sRound}, 20480')
        e('s_waitcnt lgkmcnt(0)')
        e(f's_cmp_eq_u32 s{sRnd}, 2')
        e('s_cbranch_scc1 L_noprep')
        load_rows(X, sR, sRound)
        lab('L_noprep')
        e('s_waitcnt lgkmcnt(0)')
        q = Q()
    for wi, which in enumerate('ab'):
        pos = (2 * j + wi - 2 * (NT - 1)) % (2 * NT)
        if pos != 0:
            setprio(pos)
        part(q, j, which)
assert q.q == ['V0', 'V0'], q.q
e(f's_cmp_eq_u32 s{sRnd}, 1')
e(f's_cselect_b32 s{sInc}, s{sBm}, s{sBp}')
e(f's_add_u32 s{sRnd}, s{sRnd}, 1')
e(f's_cmp_lt_u32 s{sRnd}, 4')
e('s_cbranch_scc1 L_loop')
ts()
cvts(SB, 3)
e('s_nop 1')
mfma16(OB, V1, SB + 8, vr(OB, 16))
lab('L_epi')
e('v_mbcnt_lo_u32_b32 v0, -1, 0')
e('v_mbcnt_hi_u32_b32 v0, -1, v0')
e(f's_mul_i32 s14, s{sWave}, 3072')
e(f's_add_u32 s14, s14, {EX}')
e(f's_xor_b32 s15, s{sWave}, 8')
e('s_mul_i32 s15, s15, 3072')
e(f's_add_u32 s15, s15, {EX}')
e('v_lshlrev_b32 v1, 4, v0')
e('v_add_u32 v2, s14, v1')
e('v_add_u32 v3, s15, v1')
e('s_nop 7')
e('s_nop 7')
e(f'ds_write_b128 v2, {vr(OB,4)}')
e(f'ds_write_b128 v2, {vr(OB+4,4)} offset:1024')
e(f'ds_write_b128 v2, {vr(OB+8,4)} offset:2048')
e(f's_and_b32 s14, s{sWave}, 7')
e('s_lshl_b32 s14, s14, 6')
e(f's_lshl_b32 s15, s{sRole}, 5')
e('s_add_u32 s14, s14, s15')
e('v_and_b32 v4, 31, v0')
e('v_add_u32 v4, s14, v4')
e('v_mul_u32_u24 v4, 40, v4')
e('v_lshrrev_b32 v5, 5, v0')
e('v_lshlrev_b32 v5, 4, v5')
e('v_add_u32 v5, v4, v5')
e('s_waitcnt lgkmcnt(0)')
e('s_barrier')
R = 16
e(f'ds_read_b128 {vr(R,4)}, v3')
e(f'ds_read_b128 {vr(R+4,4)}, v3 offset:1024')
e(f'ds_read_b128 {vr(R+8,4)}, v3 offset:2048')
e('s_waitcnt lgkmcnt(0)')
for i in range(12):
    e(f'v_add_f32 {vr(OA+i)}, {vr(OA+i)}, {vr(R+i)}')
l0, l1 = 28, 29
e(f'v_mov_b32 {vr(l0)}, {vr(OA+8)}')
e(f'v_mov_b32 {vr(l1)}, {vr(OA+8)}')
e('s_nop 1')
e(f'v_permlane32_swap_b32 {vr(l0)}, {vr(l1)}')
e('s_nop 1')
e(f'v_rcp_f32 {vr(l1)}, {vr(l1)}')
e('s_nop 0')
for i in range(12):
    e(f'v_mul_f32 {vr(OA+i)}, {vr(OA+i)}, {vr(l1)}')
W = 16
for i in range(6):
    e(f'v_cvt_pk_bf16_f32 {vr(W+i)}, {vr(OA+2*i)}, {vr(OA+2*i+1)}')
e('s_nop 1')
e(f'v_permlane32_swap_b32 {vr(W)}, {vr(W+2)}')
e(f'v_permlane32_swap_b32 {vr(W+1)}, {vr(W+3)}')
e('s_nop 1')
e(f'buffer_store_dwordx4 {vr(W,4)}, v5, s[{sO}:{sO+3}], s{sQoff} offen')
e('s_mov_b64 exec, 0xffffffff')
e(f'buffer_store_dwordx2 {vr(W+4,2)}, v4, s[{sO}:{sO+3}], s{sQoff} offen offset:32')
if TIMING:
    e('s_mov_b64 exec, -1')
    e('s_waitcnt vmcnt(0)')
    ts()
    e('s_memrealtime s[72:73]')
    e('s_waitcnt lgkmcnt(0)')
    e('s_cmp_eq_u32 s2, 0')
    e('s_cselect_b32 s76, 0, 128')
    e('s_cmp_eq_u32 s2, 0')
    e('s_cbranch_scc1 L_dbg')
    e('s_cmp_eq_u32 s2, 200')
    e('s_cbranch_scc0 L_end')
    lab('L_dbg')
    e(f's_cmp_eq_u32 s{sWave}, {int(os.environ.get("TWAVE","0"))}')
    e('s_cbranch_scc0 L_end')
    e('v_cmp_eq_u32 vcc, 0, v0')
    e('v_mov_b32 v1, s76')
    e('s_and_saveexec_b64 s[78:79], vcc')
    e('s_cbranch_execz L_end')
    for i in range(_ts[0]):
        e(f'v_mov_b32 v2, s{50+2*i}')
        e(f'global_store_dword v1, v2, s[74:75] offset:{4*i}')
    e('v_mov_b32 v2, s70')
    e(f'global_store_dword v1, v2, s[74:75] offset:{4*_ts[0]}')
    e('v_mov_b32 v2, s72')
    e(f'global_store_dword v1, v2, s[74:75] offset:{4*_ts[0]+4}')
e('s_endpgm')
lab('L_slow')
e(f'v_mov_b32 {vr(mA)}, 0xff800000')
e(f'v_mov_b32 {vr(mB)}, 0xff800000')
e(f'v_subrev_u32 {vr(w0)}, {BUF}, {vr(w0)}')
e(f'v_subrev_u32 {vr(w1)}, {BUF}, {vr(w1)}')
e(f's_mov_b32 s{sPass}, 0')
lab('L_s_pass')
e(f's_mov_b32 s{sRound}, s{sHead}')
e(f's_mov_b32 s{sRnd}, 0')
lab('L_s_round')
e('s_waitcnt vmcnt(0) lgkmcnt(0)')
e('s_barrier')
load_rows(X, sR, sRound)
e('s_waitcnt vmcnt(0)')
e(f's_cmp_eq_u32 s{sRole}, 0')
e('s_cbranch_scc0 L_s_pvw')
norm(X)
write_k(w0, w1)
e('s_branch L_s_pdone')
lab('L_s_pvw')
write_v(w0)
lab('L_s_pdone')
e('s_waitcnt lgkmcnt(0)')
e('s_barrier')
e(f's_mov_b32 s{sTau}, 0')
lab('L_s_tile')
q = Q()
rd_k1(q, 0)
rd_k2(q, 0)
rd_v(q, 0, 0)
rd_v(q, 1, 0)
e('s_waitcnt lgkmcnt(0)')
mfma16(SA, K1, QA1, '0')
mfma16(SB, K1, QB1, '0')
mfma8(SA, K2, QA2, vr(SA, 16))
mfma8(SB, K2, QB2, vr(SB, 16))
e('s_nop 7')
e('s_nop 7')
e(f's_cmp_eq_u32 s{sPass}, 1')
e('s_cbranch_scc1 L_s_pv')
for i in range(0, 16, 2):
    e(f'v_max3_f32 {vr(mA)}, {vr(SA+i)}, {vr(SA+i+1)}, {vr(mA)}')
    e(f'v_max3_f32 {vr(mB)}, {vr(SB+i)}, {vr(SB+i+1)}, {vr(mB)}')
e('s_branch L_s_next')
lab('L_s_pv')
for (S, O, m) in ((SA, OA, mA), (SB, OB, mB)):
    for i in range(16):
        e(f'v_sub_f32 {vr(S+i)}, {vr(S+i)}, {vr(m)}')
        e(f'v_mul_f32 {vr(S+i)}, s{sAbsT}, {vr(S+i)}')
        e(f'v_mul_f32 {vr(S+i)}, 0x3fb8aa3b, {vr(S+i)}')
        e(f'v_exp_f32 {vr(S+i)}, {vr(S+i)}')
    e('s_nop 0')
    for g in range(4):
        cvts(S, g)
    e('s_nop 1')
    mfma16(O, V0, S, vr(O, 16))
    mfma16(O, V1, S + 8, vr(O, 16))
    e('s_nop 7')
lab('L_s_next')
e(f'v_add_u32 {vr(aK1)}, {SLOT}, {vr(aK1)}')
e(f'v_add_u32 {vr(aK2)}, {SLOT}, {vr(aK2)}')
e(f'v_add_u32 {vr(aV)}, {SLOT}, {vr(aV)}')
e(f's_add_u32 s{sTau}, s{sTau}, 1')
e(f's_cmp_lt_u32 s{sTau}, 8')
e('s_cbranch_scc1 L_s_tile')
e(f'v_subrev_u32 {vr(aK1)}, {8*SLOT}, {vr(aK1)}')
e(f'v_subrev_u32 {vr(aK2)}, {8*SLOT}, {vr(aK2)}')
e(f'v_subrev_u32 {vr(aV)}, {8*SLOT}, {vr(aV)}')
e(f's_add_u32 s{sRound}, s{sRound}, 20480')
e(f's_add_u32 s{sRnd}, s{sRnd}, 1')
e(f's_cmp_lt_u32 s{sRnd}, 4')
e('s_cbranch_scc1 L_s_round')
e(f's_cmp_eq_u32 s{sPass}, 1')
e('s_cbranch_scc1 L_s_fin')
for m in (mA, mB):
    e(f'v_mov_b32 {vr(TMP)}, {vr(m)}')
    e(f'v_mov_b32 {vr(TMP+1)}, {vr(m)}')
    e('s_nop 1')
    e(f'v_permlane32_swap_b32 {vr(TMP)}, {vr(TMP+1)}')
    e('s_nop 1')
    e(f'v_max_f32 {vr(m)}, {vr(TMP)}, {vr(TMP+1)}')
e(f'v_mbcnt_lo_u32_b32 {vr(TMP)}, -1, 0')
e(f'v_mbcnt_hi_u32_b32 {vr(TMP)}, -1, {vr(TMP)}')
e(f'v_lshlrev_b32 {vr(TMP)}, 3, {vr(TMP)}')
e(f's_lshl_b32 s14, s{sWave}, 9')
e(f's_add_u32 s14, s14, {QX}')
e(f's_xor_b32 s15, s{sWave}, 8')
e('s_lshl_b32 s15, s15, 9')
e(f's_add_u32 s15, s15, {QX}')
e(f'v_add_u32 {vr(TMP+1)}, s14, {vr(TMP)}')
e(f'v_add_u32 {vr(TMP+2)}, s15, {vr(TMP)}')
e('s_barrier')
e(f'ds_write_b64 {vr(TMP+1)}, {vr(mA,2)}')
e('s_waitcnt lgkmcnt(0)')
e('s_barrier')
e(f'ds_read_b64 {vr(TMP+4,2)}, {vr(TMP+2)}')
e('s_waitcnt lgkmcnt(0)')
e(f'v_max_f32 {vr(mA)}, {vr(mA)}, {vr(TMP+5)}')
e(f'v_max_f32 {vr(mB)}, {vr(mB)}, {vr(TMP+4)}')
e(f's_mov_b32 s{sPass}, 1')
e('s_branch L_s_pass')
lab('L_s_fin')
e('s_waitcnt lgkmcnt(0)')
e('s_barrier')
e('s_branch L_epi')
lab('L_end')

hdr = PRE.replace('; @launch grid=(10240,1,1) block=(256,1,1) lds=0',
                  f'; @launch grid=(256,1,1) block=(1024,1,1) lds={LDS}')
post = POST.replace('.amdhsa_next_free_vgpr 256', f'.amdhsa_next_free_vgpr {NV}').replace(
    '.amdhsa_accum_offset 256', f'.amdhsa_accum_offset {NV}')
open(OUT, 'w').write(hdr + K + ':\n' + '\n'.join(L) + '\ns_endpgm\n' + post)
print('wrote', OUT, len(L), 'lines', 'LDS', LDS)
```

```python
from gen import build
N=512
IT=200
def rep(f, n=N): return "\n".join("  "+f(i) for i in range(n))
tests = {}
tests['d_dot2']   = rep(lambda i: f"v_dot2_f32_bf16 v{16+i%32}, v{48+i%32}, v{80+i%32}, 0")
tests['d_dot2acc']   = rep(lambda i: f"v_dot2_f32_bf16 v{16+i%32}, v{48+i%32}, v{80+i%32}, v{16+i%32}")
tests['d_dot2c']   = rep(lambda i: f"v_dot2c_f32_bf16 v{16+i%32}, v{48+i%32}, v{80+i%32}")
tests['d_mul']   = rep(lambda i: f"v_mul_f32 v{16+i%32}, v{48+i%32}, v{80+i%32}")
tests['d_lshl']   = rep(lambda i: f"v_lshlrev_b32 v{16+i%32}, 16, v{48+i%32}")
tests['d_pkmul']   = rep(lambda i: f"v_pk_mul_f32 v[{16+2*(i%16)}:{17+2*(i%16)}], v[{48+2*(i%16)}:{49+2*(i%16)}], v[{80+2*(i%16)}:{81+2*(i%16)}]")
tests['d_mixlo']   = rep(lambda i: f"v_fma_mixlo_f16 v{16+i%32}, v{48+i%32}, v{80+i%32}, 0")
tests['d_mix']   = rep(lambda i: f"v_fma_mix_f32 v{16+i%32}, v{48+i%32}, v{80+i%32}, 0 op_sel_hi:[1,0,0]")
tests['d_pkmulf16']   = rep(lambda i: f"v_pk_mul_f16 v{16+i%32}, v{48+i%32}, v{80+i%32}")
tests['d_mulsdwa']   = rep(lambda i: f"v_mul_f32_sdwa v{16+i%32}, v{48+i%32}, v{80+i%32} dst_sel:DWORD dst_unused:UNUSED_PAD src0_sel:WORD_1 src1_sel:DWORD")
tests['d_or']   = rep(lambda i: f"v_or_b32 v{16+i%32}, v{48+i%32}, v{80+i%32}")
tests['d_addu']   = rep(lambda i: f"v_add_u32 v{16+i%32}, v{48+i%32}, v{80+i%32}")
tests['d_mov']   = rep(lambda i: f"v_mov_b32 v{16+i%32}, v{48+i%32}")
tests['d_cndmask']   = rep(lambda i: f"v_cndmask_b32 v{16+i%32}, v{48+i%32}, v{80+i%32}, vcc")
tests['d_max']   = rep(lambda i: f"v_max_f32 v{16+i%32}, v{48+i%32}, v{80+i%32}")
tests['d_cvtf16']   = rep(lambda i: f"v_cvt_f16_f32 v{16+i%32}, v{48+i%32}")
tests['d_fmac']   = rep(lambda i: f"v_fmac_f32 v{16+i%32}, v{48+i%32}, v{80+i%32}")
tests['d_exp1add1']   = rep(lambda i: f"v_exp_f32 v{16+i%32}, v{48+i%32}" if i%2==0 else f"v_add_f32 v{16+i%32}, v{48+i%32}, v{80+i%32}")
tests['d_exp4add4']   = rep(lambda i: f"v_exp_f32 v{16+i%32}, v{48+i%32}" if (i//4)%2==0 else f"v_add_f32 v{16+i%32}, v{48+i%32}, v{80+i%32}")
tests['d_exp16add16']   = rep(lambda i: f"v_exp_f32 v{16+i%32}, v{48+i%32}" if (i//16)%2==0 else f"v_add_f32 v{16+i%32}, v{48+i%32}, v{80+i%32}")
tests['d_cvt1add1']   = rep(lambda i: f"v_cvt_pk_bf16_f32 v{16+i%32}, v{48+i%32}, v{80+i%32}" if i%2==0 else f"v_add_f32 v{16+i%32}, v{48+i%32}, v{80+i%32}")
tests['d_cvt1add2']   = rep(lambda i: f"v_cvt_pk_bf16_f32 v{16+i%32}, v{48+i%32}, v{80+i%32}" if i%3==0 else f"v_add_f32 v{16+i%32}, v{48+i%32}, v{80+i%32}", 510)
for k,b in tests.items():
    build(k, b, iters=IT, nwaves=16)
open('list2.txt','w').write("\n".join(tests.keys()))
import json
print(json.dumps(["mb5/host","mb5/run2.sh","mb5/list2.txt"]+[f"mb5/{k}.co" for k in tests]))
```
